```python
import torch

def _softmax(x, axis=-1):
    return torch.softmax(x, dim=axis)
def _gelu(x):
    return torch.nn.functional.gelu(x, approximate="tanh")
def _silu(x):
    return torch.nn.functional.silu(x)
def _sigmoid(x):
    return torch.sigmoid(x)
def _layernorm(x, axis=-1, eps=1e-5):
    m = x.mean(dim=axis, keepdim=True)
    v = x.var(dim=axis, keepdim=True, unbiased=False)
    return (x - m) / torch.sqrt(v + eps)
def _scatter_add(tgt, idx, src, axis=0):
    return tgt.clone().index_add_(axis, idx, src)
def _segment_sum(src, seg, n):
    out = torch.zeros((n,) + src.shape[1:], dtype=src.dtype)
    return out.index_add_(0, seg, src)
def _pad(x, pw):
    flat = tuple(v for pair in reversed(pw) for v in pair)
    return torch.nn.functional.pad(x, flat)

kernel_name = 'standalone__w4a16_gemm_dequant__prompt'

def setup_inputs():

    _w = (lambda a: (lambda t: t.to(torch.bfloat16) if t.is_floating_point() else t)(torch.as_tensor(a)))
    B, S, D, F = 1, 2048, 1024, 3584
    G = 32 if 32 > 0 else D
    D = (D // G) * G
    ng = D // G
    qw = torch.randint(0, 16, (D, F)).to(torch.int32)
    return {
        "x": _w((lambda *s: torch.randn(*s, dtype=torch.bfloat16) * 0.05)(B, S, D)),
        "qw": _w(qw),
        "scales": _w(torch.abs((lambda *s: torch.randn(*s, dtype=torch.bfloat16) * 0.05)(ng, F)) + 0.01),
        "zeros": _w(torch.full((ng, F), 8.0, dtype=float)),
    }

def reference(x, qw, scales, zeros):
    B, S, D = x.shape
    ng, F = scales.shape
    G = D // ng
    s = (lambda x, n, axis: torch.repeat_interleave(x, n, dim=axis))(scales, G, axis=0)
    z = (lambda x, n, axis: torch.repeat_interleave(x, n, dim=axis))(zeros, G, axis=0)
    w = ((lambda x, dt: x.to(dt))(qw, x.dtype) - z) * s
    return x @ w
```

```python
import sys, argparse

NAME = "standalone__w4a16_gemm_dequant__prompt_kernel"
M, K, N = 2048, 1024, 3584
QROW = N * 4
XROW = K * 2
OROW = N * 2

class Asm:
    def __init__(self): self.l = []
    def __call__(self, s): self.l.append("    " + s)
    def label(self, s): self.l.append(s + ":")
    def c(self, s): self.l.append("    ; " + s)
    def text(self): return "\n".join(self.l) + "\n"

def vr(b, n=1): return f"v{b}" if n == 1 else f"v[{b}:{b+n-1}]"
def sr(b, n=1): return f"s{b}" if n == 1 else f"s[{b}:{b+n-1}]"

def gen(opt):
    a = Asm()
    MIX = opt.mix
    STAMP = opt.stamp
    SX, SQ, SS, SZ, SO = 16, 20, 24, 28, 32
    sWave, sPW, sM0, sN0 = 36, 37, 38, 39
    sQoff, sXoff, sXslot, sIdx, sCnt, sTmp, sTmp2, sXk = 40, 41, 42, 43, 44, 45, 46, 47
    sST = 60
    nst = [0]
    def stamp():
        if STAMP:
            a(f"s_memtime {sr(sST + 2*nst[0], 2)}"); nst[0] += 1
    XS = 4
    BBASE = XS * 32768

    if STAMP: a(f"s_memtime {sr(sST,2)}"); nst[0] = 1
    a("s_cmp_ge_u32 s2, 224")
    a("s_cbranch_scc1 L_end")
    a("s_load_dwordx4 s[4:7], s[0:1], 0")
    a("s_load_dwordx4 s[8:11], s[0:1], 16")
    a("s_load_dwordx2 s[12:13], s[0:1], 32")
    if STAMP: a("s_load_dwordx2 s[14:15], s[0:1], 48")
    a("v_lshrrev_b32 v1, 6, v0")
    a("v_and_b32 v0, 63, v0")
    a(f"v_readfirstlane_b32 {sr(sWave)}, v1")
    a(f"s_and_b32 {sr(sTmp)}, s2, 1")
    a(f"s_lshl_b32 {sr(sTmp)}, {sr(sTmp)}, 2")
    a(f"s_bfe_u32 {sr(sTmp2)}, s2, 0x20003")
    a(f"s_add_u32 {sr(sM0)}, {sr(sTmp)}, {sr(sTmp2)}")
    a(f"s_lshl_b32 {sr(sM0)}, {sr(sM0)}, 8")
    a(f"s_bfe_u32 {sr(sTmp)}, s2, 0x20001")
    a(f"s_mul_i32 {sr(sTmp)}, {sr(sTmp)}, 7")
    a(f"s_lshr_b32 {sr(sTmp2)}, s2, 5")
    a(f"s_add_u32 {sr(sN0)}, {sr(sTmp)}, {sr(sTmp2)}")
    a(f"s_lshl_b32 {sr(sN0)}, {sr(sN0)}, 7")
    a(f"s_and_b32 {sr(sPW)}, {sr(sWave)}, 3")
    for srd, size in ((SX, M*XROW), (SQ, K*QROW), (SS, 32*OROW), (SZ, 32*OROW), (SO, M*OROW)):
        a(f"s_mov_b32 {sr(srd+2)}, {size}")
        a(f"s_mov_b32 {sr(srd+3)}, 0x20000")
    def srd_bases():
        a("s_waitcnt lgkmcnt(0)")
        for srd, p in ((SX, 4), (SQ, 6), (SS, 8), (SZ, 10), (SO, 12)):
            a(f"s_mov_b64 {sr(srd,2)}, {sr(p,2)}")
    prod_first = opt.prodfirst
    a(f"s_cmp_ge_u32 {sr(sWave)}, 4")
    a(("s_cbranch_scc1" if prod_first else "s_cbranch_scc0") + " L_consumer")

    vQO, vXO = 2, 10
    vSO, vWA, vRA0, vRA1 = 18, 19, 20, 21
    vT = 24
    vSF, vNZ = 32, 36
    vZF = 40
    vW = 48
    vQ = 64
    vSZ = 128
    if opt.pprio: a(f"s_setprio {opt.pprio}")
    a("v_and_b32 v22, 31, v0")
    a("v_lshrrev_b32 v23, 5, v0")
    a(f"s_lshl_b32 {sr(sTmp)}, {sr(sPW)}, 1")
    a(f"v_add_u32 v1, {sr(sTmp)}, v23")
    a(f"v_mul_u32_u24 v1, {8*QROW}, v1")
    a(f"s_lshl_b32 {sr(sTmp)}, {sr(sN0)}, 2")
    a(f"v_lshl_add_u32 v1, v22, 4, v1")
    a(f"v_add_u32 {vr(vQO)}, {sr(sTmp)}, v1")
    for j in range(1, 8):
        a(f"v_add_u32 {vr(vQO+j)}, {QROW}, {vr(vQO+j-1)}")
    a(f"s_lshl_b32 {sr(sTmp)}, {sr(sPW)}, 6")
    a(f"s_add_u32 {sr(sTmp)}, {sr(sTmp)}, {sr(sM0)}")
    a("v_lshrrev_b32 v1, 3, v0")
    a(f"v_add_u32 v1, {sr(sTmp)}, v1")
    a("v_lshlrev_b32 v1, 11, v1")
    a(f"v_lshrrev_b32 {vr(vT)}, 4, v0")
    a(f"v_and_b32 {vr(vT+1)}, 7, v0")
    a(f"v_xor_b32 {vr(vT)}, {vr(vT)}, {vr(vT+1)}")
    a(f"v_lshl_add_u32 {vr(vXO)}, {vr(vT)}, 4, v1")
    a(f"v_xor_b32 v1, 64, {vr(vXO)}")
    for q in range(1, 8):
        src = "v1" if q & 1 else vr(vXO)
        a(f"v_add_u32 {vr(vXO+q)}, {q*8*XROW - (q&3)*1024}, {src}")
    a(f"s_lshr_b32 {sr(sTmp)}, {sr(sPW)}, 1")
    a(f"v_lshrrev_b32 v1, 4, v0")
    a(f"v_lshl_add_u32 v1, v1, 1, {sr(sTmp)}")
    a(f"v_mul_u32_u24 v1, {OROW}, v1")
    a(f"v_and_b32 {vr(vT)}, 15, v0")
    a(f"v_lshl_add_u32 v1, {vr(vT)}, 4, v1")
    a(f"s_lshl_b32 {sr(sTmp)}, {sr(sN0)}, 1")
    a(f"v_add_u32 {vr(vSO)}, {sr(sTmp)}, v1")
    a(f"s_lshl_b32 {sr(sXslot)}, {sr(sPW)}, 13")
    srd_bases()
    stamp()

    ops = []
    def ld_q(u, j, tag, soff):
        r = vQ + 32*u + 4*j
        a(f"buffer_load_dwordx4 {vr(r,4)}, {vr(vQO+j)}, {sr(SQ,4)}, {soff} offen")
        ops.append(tag)
    def ld_x(q, tag, soff):
        off = (q & 3) * 1024
        a(f"buffer_load_dwordx4 {vr(vXO+q)}, {sr(SX,4)}, {soff} offen" + (f" offset:{off}" if off else "") + " lds")
        ops.append(tag)
    for j in range(8): ld_q(0, j, ("q", 0, j), "0")
    a(f"s_add_u32 m0, {sr(sXslot)}, {3*32768}")
    for arr, srd in ((0, SS), (1, SZ)):
        if arr == 1: a(f"s_add_u32 m0, {sr(sXslot)}, {3*32768+4096}")
        for t in range(4):
            if t == 0: a("s_nop 0"); so = "0"
            else:
                a(f"s_mov_b32 {sr(sTmp)}, {t*(8*OROW-1024)}"); so = sr(sTmp)
            a(f"buffer_load_dwordx4 {vr(vSO)}, {sr(srd,4)}, {so} offen" + (f" offset:{t*1024}" if t else "") + " lds")
            ops.append(("s", arr, t))
    for q in range(8):
        if q % 4 == 0:
            a(f"s_add_u32 m0, {sr(sXslot)}, {q*1024}"); a("s_nop 0")
        ld_x(q, ("x", 0, q), "0")
    a(f"s_mov_b32 {sr(sQoff)}, {64*QROW}")
    a(f"s_mov_b32 {sr(sXoff)}, 128")
    for p in range(4):
        ld_q(1, 2*p, ("q", 1, 2*p), sr(sQoff)); ld_q(1, 2*p+1, ("q", 1, 2*p+1), sr(sQoff))
        if p % 2 == 0:
            a(f"s_add_u32 m0, {sr(sXslot)}, {32768 + p*2048}"); a("s_nop 0")
        ld_x(2*p, ("x", 1, 2*p), sr(sXoff)); ld_x(2*p+1, ("x", 1, 2*p+1), sr(sXoff))
    a(f"s_and_b32 {sr(sTmp)}, {sr(sPW)}, 1")
    a(f"s_lshl_b32 {sr(sTmp)}, {sr(sTmp)}, 1")
    a(f"v_add_u32 v1, {sr(sTmp)}, v23")
    a(f"v_lshrrev_b32 {vr(vT)}, 1, v22")
    a(f"v_lshl_add_u32 v1, v1, 4, {vr(vT)}")
    a(f"v_and_b32 {vr(vT)}, 1, v22")
    a(f"v_lshlrev_b32 {vr(vT+1)}, 2, {vr(vT)}")
    a(f"v_xor_b32 v1, v1, {vr(vT+1)}")
    a(f"v_lshlrev_b32 v1, 4, v1")
    a(f"v_lshl_add_u32 v1, {vr(vT)}, 12, v1")
    a(f"s_lshr_b32 {sr(sTmp)}, {sr(sPW)}, 1")
    a(f"s_lshl_b32 {sr(sTmp)}, {sr(sTmp)}, 13")
    a(f"s_add_u32 {sr(sTmp)}, {sr(sTmp)}, {BBASE}")
    a(f"v_add_u32 {vr(vWA)}, {sr(sTmp)}, v1")
    a(f"s_add_u32 {sr(sTmp)}, {sr(sXslot)}, {3*32768}")
    a(f"v_lshlrev_b32 v1, 3, v22")
    a(f"v_add_u32 {vr(vRA0)}, {sr(sTmp)}, v1")
    a(f"v_add_u32 {vr(vRA1)}, 256, {vr(vRA0)}")
    a(f"s_add_u32 {sr(sXslot)}, {sr(sXslot)}, {2*32768}")
    a(f"s_mov_b32 {sr(sIdx)}, 0")
    a(f"s_mov_b32 {sr(sXk)}, 128")
    def need(tag):
        return len(ops) - 1 - ops.index(tag)
    a(f"s_waitcnt vmcnt({need(('s',1,3))})")
    for i in range(16):
        a(f"ds_read2st64_b64 {vr(vSZ+4*i,4)}, {vr(vRA1 if i&1 else vRA0)} offset0:{i>>1} offset1:{8+(i>>1)}")
    a("s_waitcnt lgkmcnt(0)")
    stamp()

    sim = list(ops)
    waits = {}
    for i in range(16):
        for p in range(4):
            n = len(sim) - 1 - sim.index(("q", i, 2*p+1))
            waits[("q", i & 1, p)] = min(waits.get(("q", i & 1, p), 63), n)
            sim += [("q", i+2, 2*p), ("q", i+2, 2*p+1), ("x", i+2, 2*p), ("x", i+2, 2*p+1)]
        n = len(sim) - 1 - sim.index(("x", i, 7))
        waits[("x", i & 1)] = min(waits.get(("x", i & 1), 63), n)

    a.label("L_ploop")
    for u in range(2):
        a(f"s_set_gpr_idx_on {sr(sIdx)}, gpr_idx(SRC1)")
        b = vSZ + 4*u
        a(f"v_lshlrev_b32 {vr(vSF)}, 16, {vr(b)}")
        a(f"v_and_b32 {vr(vSF+1)}, 0xffff0000, {vr(b)}")
        a(f"v_lshlrev_b32 {vr(vSF+2)}, 16, {vr(b+1)}")
        a(f"v_and_b32 {vr(vSF+3)}, 0xffff0000, {vr(b+1)}")
        a(f"v_lshlrev_b32 {vr(vZF)}, 16, {vr(b+2)}")
        a(f"v_and_b32 {vr(vZF+1)}, 0xffff0000, {vr(b+2)}")
        a(f"v_lshlrev_b32 {vr(vZF+2)}, 16, {vr(b+3)}")
        a(f"v_and_b32 {vr(vZF+3)}, 0xffff0000, {vr(b+3)}")
        a("s_set_gpr_idx_off")
        a(f"s_add_u32 {sr(sQoff)}, {sr(sQoff)}, {64*QROW}")
        a(f"s_add_u32 {sr(sXk)}, {sr(sXk)}, 128")
        a(f"s_cmp_lt_u32 {sr(sXk)}, {XROW}")
        a(f"s_cselect_b32 {sr(sXoff)}, {sr(sXk)}, 0x10000000")
        for e in range(4):
            a(f"v_mul_f32_e64 {vr(vNZ+e)}, -{vr(vZF+e)}, {vr(vSF+e)}")
        if MIX:
            for e in range(4):
                a(f"v_mul_f32 {vr(vSF+e)}, 0x4b800000, {vr(vSF+e)}")
        for p in range(4):
            if p % 2 == 0:
                a(f"s_add_u32 m0, {sr(sXslot)}, {p*2048}")
            a(f"s_waitcnt vmcnt({waits[('q',u,p)]})")
            q0 = vQ + 32*u + 8*p
            if MIX:
                for t in range(8):
                    a(f"v_fma_mix_f32 {vr(vT+t)}, {vr(q0+t)}, {vr(vSF+(t&3))}, {vr(vNZ+(t&3))} op_sel_hi:[1,0,0]")
                ld_q(u, 2*p, None, sr(sQoff)); ld_q(u, 2*p+1, None, sr(sQoff))
            else:
                for t in range(8):
                    a(f"v_cvt_f32_i32 {vr(vT+t)}, {vr(q0+t)}")
                ld_q(u, 2*p, None, sr(sQoff)); ld_q(u, 2*p+1, None, sr(sQoff))
                for t in range(8):
                    a(f"v_fma_f32 {vr(vT+t)}, {vr(vT+t)}, {vr(vSF+(t&3))}, {vr(vNZ+(t&3))}")
            ld_x(2*p, None, sr(sXoff))
            for e in range(4):
                a(f"v_cvt_pk_bf16_f32 {vr(vW+4*e+p)}, {vr(vT+e)}, {vr(vT+4+e)}")
            ld_x(2*p+1, None, sr(sXoff))
        for e in range(4):
            a(f"ds_write_b128 {vr(vWA)}, {vr(vW+4*e,4)} offset:{u*16384 + e*1024}")
        a(f"s_add_u32 {sr(sXslot)}, {sr(sXslot)}, 32768")
        a(f"s_and_b32 {sr(sXslot)}, {sr(sXslot)}, 0x1ffff")
        if u == 1:
            a(f"s_add_u32 {sr(sIdx)}, {sr(sIdx)}, 8")
            a(f"s_cmp_lt_u32 {sr(sIdx)}, 64")
        a(f"s_waitcnt vmcnt({waits[('x',u)]}) lgkmcnt(0)")
        a("s_barrier")
    a("s_cbranch_scc1 L_ploop")
    stamp()
    if STAMP: a("s_branch L_stamp")
    a("s_endpgm")

    a.label("L_consumer")
    nst[0] = 1
    if opt.cprio: a(f"s_setprio {opt.cprio}")
    vACC = 0
    vA = 128
    vB = 160
    vXA0, vXA1, vBA0, vBA1, vOO = 224, 225, 226, 227, 228
    vE = 232
    L = 229
    a(f"v_mov_b32 {vr(L)}, v0")
    a(f"v_and_b32 v1, 15, {vr(L)}")
    a(f"v_lshrrev_b32 v2, 4, {vr(L)}")
    a(f"v_lshrrev_b32 v3, 1, v1")
    a(f"v_xor_b32 v3, v3, v2")
    a(f"v_lshlrev_b32 v3, 4, v3")
    a(f"v_lshl_add_u32 v3, v1, 7, v3")
    a(f"s_lshl_b32 {sr(sTmp)}, {sr(sPW)}, 13")
    a(f"v_add_u32 {vr(vXA0)}, {sr(sTmp)}, v3")
    a(f"v_xor_b32 {vr(vXA1)}, 64, {vr(vXA0)}")
    a(f"v_lshlrev_b32 v3, 4, {vr(L)}")
    a(f"v_add_u32 {vr(vBA0)}, {BBASE}, v3")
    a(f"v_xor_b32 {vr(vBA1)}, 64, {vr(vBA0)}")
    a(f"s_lshl_b32 {sr(sTmp)}, {sr(sPW)}, 6")
    a(f"s_add_u32 {sr(sTmp)}, {sr(sTmp)}, {sr(sM0)}")
    a(f"v_lshl_add_u32 v3, v2, 2, {sr(sTmp)}")
    a(f"v_mul_u32_u24 v3, {OROW}, v3")
    a(f"v_lshl_add_u32 v3, v1, 4, v3")
    a(f"s_lshl_b32 {sr(sTmp)}, {sr(sN0)}, 1")
    a(f"v_add_u32 {vr(vOO)}, {sr(sTmp)}, v3")
    for r in range(128): a(f"v_mov_b32 v{r}, 0")
    srd_bases()
    stamp()

    def reads(setn, u, h):
        r = []
        xa = vXA1 if h else vXA0
        for rb in range(4):
            r.append(f"ds_read_b128 {vr(vA+16*setn+4*rb,4)}, {vr(xa)} offset:{u*32768 + rb*2048}")
        for f in range(8):
            r.append(f"ds_read_b128 {vr(vB+32*setn+4*f,4)}, {vr(vBA1 if f>=4 else vBA0)} offset:{u*16384 + h*8192 + f*1024}")
        return [r[0], r[4], r[1], r[2], r[3]] + r[5:]
    def substep(setn, rd, extra=None):
        k = 0
        n = 0
        for f in range(8):
            for rb in range(4):
                acc = vACC + (rb*8+f)*4
                a(f"v_mfma_f32_16x16x32_bf16 {vr(acc,4)}, {vr(vA+16*setn+4*rb,4)}, {vr(vB+32*setn+4*f,4)}, {vr(acc,4)}")
                n += 1
                if n % 2 == 1 and k < len(rd):
                    a(rd[k]); k += 1
                elif extra and k >= len(rd):
                    a(extra.pop(0))
        assert k == len(rd) and not extra
    a("s_barrier")
    stamp()
    for s in reads(0, 0, 0): a(s)
    a(f"s_mov_b32 {sr(sCnt)}, 0")
    a.label("L_cloop")
    for u in range(2):
        a("s_waitcnt lgkmcnt(0)")
        ex = None
        if u == 1:
            ex = [f"v_xor_b32 {vr(vXA0)}, 0x10000, {vr(vXA0)}", f"v_xor_b32 {vr(vXA1)}, 0x10000, {vr(vXA1)}"]
        substep(0, reads(1, u, 1), ex)
        a("s_waitcnt lgkmcnt(0)")
        a("s_barrier")
        ex = None
        if u == 1:
            ex = [f"s_add_u32 {sr(sCnt)}, {sr(sCnt)}, 1", f"s_cmp_lt_u32 {sr(sCnt)}, 8"]
        substep(1, reads(0, 1-u, 0), ex)
    a("s_cbranch_scc1 L_cloop")
    stamp()
    a("s_nop 7")
    k = 0
    for rb in range(4):
        for r in range(4):
            t = vE + 4*(k % 4); k += 1
            for p in range(4):
                a(f"v_cvt_pk_bf16_f32 {vr(t+p)}, {vr(vACC+(rb*8+2*p)*4+r)}, {vr(vACC+(rb*8+2*p+1)*4+r)}")
            a(f"s_mov_b32 {sr(sTmp)}, {(16*rb+r)*OROW}")
            a(f"buffer_store_dwordx4 {vr(t,4)}, {vr(vOO)}, {sr(SO,4)}, {sr(sTmp)} offen" + (" " + opt.stflag if opt.stflag else ""))
    if STAMP:
        stamp()
        a("s_waitcnt vmcnt(0)")
        stamp()
        a.label("L_stamp")
        a("s_waitcnt lgkmcnt(0)")
        a(f"s_mov_b64 s[48:49], s[14:15]"); a("s_mov_b32 s50, 0x1000000"); a("s_mov_b32 s51, 0x20000")
        a(f"s_lshl_b32 s52, s2, 3"); a(f"s_add_u32 s52, s52, {sr(sWave)}"); a("s_lshl_b32 s52, s52, 6")
        a("s_mov_b64 exec, 1")
        a("v_mov_b32 v0, s52")
        for i in range(8):
            a(f"v_mov_b32 v2, {sr(sST+2*i)}"); a(f"v_mov_b32 v3, {sr(sST+2*i+1)}")
            a(f"buffer_store_dwordx2 v[2:3], v0, s[48:51], 0 offen offset:{8*i}")
            a("s_nop 1")
    a.label("L_end")
    a("s_endpgm")

    head = f"""; W4A16 GEMM (dequant fused): out[2048,3584] = x[2048,1024] @ ((qw - zeros) * scales)
; @launch grid=(224,1,1) block=(512,1,1) lds=163840
.amdgcn_target "amdgcn-amd-amdhsa--gfx950"
.text
.globl {NAME}
.p2align 8
.type {NAME},@function
{NAME}:
"""
    tail = f""".section .rodata,"a"
.p2align 6
.amdhsa_kernel {NAME}
  .amdhsa_next_free_vgpr 256
  .amdhsa_next_free_sgpr 102
  .amdhsa_accum_offset 256
  .amdhsa_group_segment_fixed_size 0
  .amdhsa_kernarg_size 56
  .amdhsa_user_sgpr_count 2
  .amdhsa_user_sgpr_kernarg_segment_ptr 1
  .amdhsa_system_sgpr_workgroup_id_x 1
.end_amdhsa_kernel
"""
    return head + a.text() + tail

if __name__ == "__main__":
    ap = argparse.ArgumentParser()
    ap.add_argument("-o", default="standalone__w4a16_gemm_dequant__prompt.s")
    ap.add_argument("--mix", type=int, default=0)
    ap.add_argument("--stamp", type=int, default=0)
    ap.add_argument("--prodfirst", type=int, default=1)
    ap.add_argument("--pprio", type=int, default=0)
    ap.add_argument("--cprio", type=int, default=0)
    ap.add_argument("--stflag", default="")
    opt = ap.parse_args()
    open(opt.o, "w").write(gen(opt))
```

```python
import sys, argparse

NAME = "standalone__w4a16_gemm_dequant__prompt_kernel"
M, K, N = 2048, 1024, 3584
QROW = N * 4
XROW = K * 2
OROW = N * 2

class Asm:
    def __init__(self): self.l = []
    def __call__(self, s): self.l.append("    " + s)
    def label(self, s): self.l.append(s + ":")
    def c(self, s): self.l.append("    ; " + s)
    def text(self): return "\n".join(self.l) + "\n"

def vr(b, n=1): return f"v{b}" if n == 1 else f"v[{b}:{b+n-1}]"
def sr(b, n=1): return f"s{b}" if n == 1 else f"s[{b}:{b+n-1}]"

def gen(opt):
    a = Asm()
    MIX = opt.mix
    STAMP = opt.stamp
    SX, SQ, SS, SZ, SO = 16, 20, 24, 28, 32
    sWave, sPW, sM0, sN0 = 36, 37, 38, 39
    sQoff, sXoff, sXslot, sIdx, sCnt, sTmp, sTmp2, sXk = 40, 41, 42, 43, 44, 45, 46, 47
    sST = 60
    nst = [0]
    def stamp():
        if STAMP:
            a(f"s_memtime {sr(sST + 2*nst[0], 2)}"); nst[0] += 1
    XS = 4
    BBASE = XS * 32768

    if STAMP: a(f"s_memtime {sr(sST,2)}"); nst[0] = 1
    a("s_cmp_ge_u32 s2, 224")
    a("s_cbranch_scc1 L_end")
    a("s_load_dwordx4 s[4:7], s[0:1], 0")
    a("s_load_dwordx4 s[8:11], s[0:1], 16")
    a("s_load_dwordx2 s[12:13], s[0:1], 32")
    if STAMP: a("s_load_dwordx2 s[14:15], s[0:1], 48")
    a("v_lshrrev_b32 v1, 6, v0")
    a("v_and_b32 v0, 63, v0")
    a(f"v_readfirstlane_b32 {sr(sWave)}, v1")
    if opt.map == 0:
        a(f"s_and_b32 {sr(sTmp)}, s2, 1")
        a(f"s_lshl_b32 {sr(sTmp)}, {sr(sTmp)}, 2")
        a(f"s_bfe_u32 {sr(sTmp2)}, s2, 0x20003")
        a(f"s_add_u32 {sr(sM0)}, {sr(sTmp)}, {sr(sTmp2)}")
        a(f"s_lshl_b32 {sr(sM0)}, {sr(sM0)}, 8")
        a(f"s_bfe_u32 {sr(sTmp)}, s2, 0x20001")
        a(f"s_mul_i32 {sr(sTmp)}, {sr(sTmp)}, 7")
        a(f"s_lshr_b32 {sr(sTmp2)}, s2, 5")
        a(f"s_add_u32 {sr(sN0)}, {sr(sTmp)}, {sr(sTmp2)}")
        a(f"s_lshl_b32 {sr(sN0)}, {sr(sN0)}, 7")
    else:
        a(f"s_and_b32 {sr(sTmp)}, s2, 7")
        a(f"s_mul_i32 {sr(sTmp)}, {sr(sTmp)}, 28")
        a(f"s_lshr_b32 {sr(sTmp2)}, s2, 3")
        a(f"s_add_u32 {sr(sTmp)}, {sr(sTmp)}, {sr(sTmp2)}")
        a(f"s_and_b32 {sr(sM0)}, {sr(sTmp)}, 7")
        a(f"s_lshl_b32 {sr(sM0)}, {sr(sM0)}, 8")
        a(f"s_lshr_b32 {sr(sN0)}, {sr(sTmp)}, 3")
        a(f"s_lshl_b32 {sr(sN0)}, {sr(sN0)}, 7")
    a(f"s_and_b32 {sr(sPW)}, {sr(sWave)}, 3")
    for srd, size in ((SX, M*XROW), (SQ, K*QROW), (SS, 32*OROW), (SZ, 32*OROW), (SO, M*OROW)):
        a(f"s_mov_b32 {sr(srd+2)}, {size}")
        a(f"s_mov_b32 {sr(srd+3)}, 0x20000")
    def srd_bases():
        a("s_waitcnt lgkmcnt(0)")
        for srd, p in ((SX, 4), (SQ, 6), (SS, 8), (SZ, 10), (SO, 12)):
            a(f"s_mov_b64 {sr(srd,2)}, {sr(p,2)}")
    prod_first = opt.prodfirst
    a(f"s_cmp_ge_u32 {sr(sWave)}, 4")
    a(("s_cbranch_scc1" if prod_first else "s_cbranch_scc0") + " L_consumer")

    vQO, vXO = 2, 10
    vSO, vWA, vRA0, vRA1 = 18, 19, 20, 21
    vT = 24
    vSF, vNZ = 32, 36
    vZF = 40
    vW = 48
    vQ = 64
    vSZ = 128
    if opt.pprio: a(f"s_setprio {opt.pprio}")
    a("v_and_b32 v22, 31, v0")
    a("v_lshrrev_b32 v23, 5, v0")
    a(f"s_lshl_b32 {sr(sTmp)}, {sr(sPW)}, 1")
    a(f"v_add_u32 v1, {sr(sTmp)}, v23")
    a(f"v_mul_u32_u24 v1, {8*QROW}, v1")
    a(f"s_lshl_b32 {sr(sTmp)}, {sr(sN0)}, 2")
    a(f"v_lshl_add_u32 v1, v22, 4, v1")
    a(f"v_add_u32 {vr(vQO)}, {sr(sTmp)}, v1")
    for j in range(1, 8):
        a(f"v_add_u32 {vr(vQO+j)}, {QROW}, {vr(vQO+j-1)}")
    a(f"s_lshl_b32 {sr(sTmp)}, {sr(sPW)}, 6")
    a(f"s_add_u32 {sr(sTmp)}, {sr(sTmp)}, {sr(sM0)}")
    a("v_lshrrev_b32 v1, 3, v0")
    a(f"v_add_u32 v1, {sr(sTmp)}, v1")
    a("v_lshlrev_b32 v1, 11, v1")
    a(f"v_lshrrev_b32 {vr(vT)}, 4, v0")
    a(f"v_and_b32 {vr(vT+1)}, 7, v0")
    a(f"v_xor_b32 {vr(vT)}, {vr(vT)}, {vr(vT+1)}")
    a(f"v_lshl_add_u32 {vr(vXO)}, {vr(vT)}, 4, v1")
    a(f"v_xor_b32 v1, 64, {vr(vXO)}")
    for q in range(1, 8):
        src = "v1" if q & 1 else vr(vXO)
        a(f"v_add_u32 {vr(vXO+q)}, {q*8*XROW - (q&3)*1024}, {src}")
    a(f"s_lshr_b32 {sr(sTmp)}, {sr(sPW)}, 1")
    a(f"v_lshrrev_b32 v1, 4, v0")
    a(f"v_lshl_add_u32 v1, v1, 1, {sr(sTmp)}")
    a(f"v_mul_u32_u24 v1, {OROW}, v1")
    a(f"v_and_b32 {vr(vT)}, 15, v0")
    a(f"v_lshl_add_u32 v1, {vr(vT)}, 4, v1")
    a(f"s_lshl_b32 {sr(sTmp)}, {sr(sN0)}, 1")
    a(f"v_add_u32 {vr(vSO)}, {sr(sTmp)}, v1")
    a(f"s_lshl_b32 {sr(sXslot)}, {sr(sPW)}, 13")
    srd_bases()
    stamp()

    ops = []
    def ld_q(u, j, tag, soff):
        r = vQ + 32*u + 4*j
        a(f"buffer_load_dwordx4 {vr(r,4)}, {vr(vQO+j)}, {sr(SQ,4)}, {soff} offen" + (" " + opt.qflag if opt.qflag else ""))
        ops.append(tag)
    def ld_x(q, tag, soff):
        off = (q & 3) * 1024
        a(f"buffer_load_dwordx4 {vr(vXO+q)}, {sr(SX,4)}, {soff} offen" + (f" offset:{off}" if off else "") + (" " + opt.xflag if opt.xflag else "") + " lds")
        ops.append(tag)
    for j in range(8): ld_q(0, j, ("q", 0, j), "0")
    a(f"s_add_u32 m0, {sr(sXslot)}, {3*32768}")
    for arr, srd in ((0, SS), (1, SZ)):
        if arr == 1: a(f"s_add_u32 m0, {sr(sXslot)}, {3*32768+4096}")
        for t in range(4):
            if t == 0: a("s_nop 0"); so = "0"
            else:
                a(f"s_mov_b32 {sr(sTmp)}, {t*(8*OROW-1024)}"); so = sr(sTmp)
            a(f"buffer_load_dwordx4 {vr(vSO)}, {sr(srd,4)}, {so} offen" + (f" offset:{t*1024}" if t else "") + " lds")
            ops.append(("s", arr, t))
    for q in range(8):
        if q % 4 == 0:
            a(f"s_add_u32 m0, {sr(sXslot)}, {q*1024}"); a("s_nop 0")
        ld_x(q, ("x", 0, q), "0")
    a(f"s_mov_b32 {sr(sQoff)}, {64*QROW}")
    a(f"s_mov_b32 {sr(sXoff)}, 128")
    for p in range(4):
        ld_q(1, 2*p, ("q", 1, 2*p), sr(sQoff)); ld_q(1, 2*p+1, ("q", 1, 2*p+1), sr(sQoff))
        if p % 2 == 0:
            a(f"s_add_u32 m0, {sr(sXslot)}, {32768 + p*2048}"); a("s_nop 0")
        ld_x(2*p, ("x", 1, 2*p), sr(sXoff)); ld_x(2*p+1, ("x", 1, 2*p+1), sr(sXoff))
    a(f"s_and_b32 {sr(sTmp)}, {sr(sPW)}, 1")
    a(f"s_lshl_b32 {sr(sTmp)}, {sr(sTmp)}, 1")
    a(f"v_add_u32 v1, {sr(sTmp)}, v23")
    a(f"v_lshrrev_b32 {vr(vT)}, 1, v22")
    a(f"v_lshl_add_u32 v1, v1, 4, {vr(vT)}")
    a(f"v_and_b32 {vr(vT)}, 1, v22")
    a(f"v_lshlrev_b32 {vr(vT+1)}, 2, {vr(vT)}")
    a(f"v_xor_b32 v1, v1, {vr(vT+1)}")
    a(f"v_lshlrev_b32 v1, 4, v1")
    a(f"v_lshl_add_u32 v1, {vr(vT)}, 12, v1")
    a(f"s_lshr_b32 {sr(sTmp)}, {sr(sPW)}, 1")
    a(f"s_lshl_b32 {sr(sTmp)}, {sr(sTmp)}, 13")
    a(f"s_add_u32 {sr(sTmp)}, {sr(sTmp)}, {BBASE}")
    a(f"v_add_u32 {vr(vWA)}, {sr(sTmp)}, v1")
    a(f"s_add_u32 {sr(sTmp)}, {sr(sXslot)}, {3*32768}")
    a(f"v_lshlrev_b32 v1, 3, v22")
    a(f"v_add_u32 {vr(vRA0)}, {sr(sTmp)}, v1")
    a(f"v_add_u32 {vr(vRA1)}, 256, {vr(vRA0)}")
    a(f"s_add_u32 {sr(sXslot)}, {sr(sXslot)}, {2*32768}")
    a(f"s_mov_b32 {sr(sIdx)}, 0")
    a(f"s_mov_b32 {sr(sXk)}, 128")
    def need(tag):
        return len(ops) - 1 - ops.index(tag)
    a(f"s_waitcnt vmcnt({need(('s',1,3))})")
    for i in range(16):
        a(f"ds_read2st64_b64 {vr(vSZ+4*i,4)}, {vr(vRA1 if i&1 else vRA0)} offset0:{i>>1} offset1:{8+(i>>1)}")
    a("s_waitcnt lgkmcnt(0)")
    stamp()

    sim = list(ops)
    waits = {}
    for i in range(16):
        for p in range(4):
            n = len(sim) - 1 - sim.index(("q", i, 2*p+1))
            waits[("q", i & 1, p)] = min(waits.get(("q", i & 1, p), 63), n)
            sim += [("q", i+2, 2*p), ("q", i+2, 2*p+1), ("x", i+2, 2*p), ("x", i+2, 2*p+1)]
        n = len(sim) - 1 - sim.index(("x", i, 7))
        waits[("x", i & 1)] = min(waits.get(("x", i & 1), 63), n)

    a.label("L_ploop")
    for u in range(2):
        a(f"s_set_gpr_idx_on {sr(sIdx)}, gpr_idx(SRC1)")
        b = vSZ + 4*u
        a(f"v_lshlrev_b32 {vr(vSF)}, 16, {vr(b)}")
        a(f"v_and_b32 {vr(vSF+1)}, 0xffff0000, {vr(b)}")
        a(f"v_lshlrev_b32 {vr(vSF+2)}, 16, {vr(b+1)}")
        a(f"v_and_b32 {vr(vSF+3)}, 0xffff0000, {vr(b+1)}")
        a(f"v_lshlrev_b32 {vr(vZF)}, 16, {vr(b+2)}")
        a(f"v_and_b32 {vr(vZF+1)}, 0xffff0000, {vr(b+2)}")
        a(f"v_lshlrev_b32 {vr(vZF+2)}, 16, {vr(b+3)}")
        a(f"v_and_b32 {vr(vZF+3)}, 0xffff0000, {vr(b+3)}")
        a("s_set_gpr_idx_off")
        a(f"s_add_u32 {sr(sQoff)}, {sr(sQoff)}, {64*QROW}")
        a(f"s_add_u32 {sr(sXk)}, {sr(sXk)}, 128")
        a(f"s_cmp_lt_u32 {sr(sXk)}, {XROW}")
        a(f"s_cselect_b32 {sr(sXoff)}, {sr(sXk)}, 0x10000000")
        for e in range(4):
            a(f"v_mul_f32_e64 {vr(vNZ+e)}, -{vr(vZF+e)}, {vr(vSF+e)}")
        if MIX:
            for e in range(4):
                a(f"v_mul_f32 {vr(vSF+e)}, 0x4b800000, {vr(vSF+e)}")
        for p in range(4):
            if p % 2 == 0:
                a(f"s_add_u32 m0, {sr(sXslot)}, {p*2048}")
            a(f"s_waitcnt vmcnt({waits[('q',u,p)]})")
            q0 = vQ + 32*u + 8*p
            if MIX:
                for t in range(8):
                    a(f"v_fma_mix_f32 {vr(vT+t)}, {vr(q0+t)}, {vr(vSF+(t&3))}, {vr(vNZ+(t&3))} op_sel_hi:[1,0,0]")
                ld_q(u, 2*p, None, sr(sQoff)); ld_q(u, 2*p+1, None, sr(sQoff))
            else:
                for t in range(8):
                    a(f"v_cvt_f32_i32 {vr(vT+t)}, {vr(q0+t)}")
                ld_q(u, 2*p, None, sr(sQoff)); ld_q(u, 2*p+1, None, sr(sQoff))
                for t in range(8):
                    a(f"v_fma_f32 {vr(vT+t)}, {vr(vT+t)}, {vr(vSF+(t&3))}, {vr(vNZ+(t&3))}")
            ld_x(2*p, None, sr(sXoff))
            for e in range(4):
                a(f"v_cvt_pk_bf16_f32 {vr(vW+4*e+p)}, {vr(vT+e)}, {vr(vT+4+e)}")
            ld_x(2*p+1, None, sr(sXoff))
        for e in range(4):
            a(f"ds_write_b128 {vr(vWA)}, {vr(vW+4*e,4)} offset:{u*16384 + e*1024}")
        a(f"s_add_u32 {sr(sXslot)}, {sr(sXslot)}, 32768")
        a(f"s_and_b32 {sr(sXslot)}, {sr(sXslot)}, 0x1ffff")
        if u == 1:
            a(f"s_add_u32 {sr(sIdx)}, {sr(sIdx)}, 8")
            a(f"s_cmp_lt_u32 {sr(sIdx)}, 64")
        a(f"s_waitcnt vmcnt({waits[('x',u)]}) lgkmcnt(0)")
        a("s_barrier")
    a("s_cbranch_scc1 L_ploop")
    stamp()
    if STAMP: a("s_branch L_stamp")
    a("s_endpgm")

    a.label("L_consumer")
    nst[0] = 1
    if opt.cprio: a(f"s_setprio {opt.cprio}")
    vACC = 0
    vA = 128
    vB = 160
    vXA0, vXA1, vBA0, vBA1, vOO = 224, 225, 226, 227, 228
    vE = 232
    L = 229
    a(f"v_mov_b32 {vr(L)}, v0")
    a(f"v_and_b32 v1, 15, {vr(L)}")
    a(f"v_lshrrev_b32 v2, 4, {vr(L)}")
    a(f"v_lshrrev_b32 v3, 1, v1")
    a(f"v_xor_b32 v3, v3, v2")
    a(f"v_lshlrev_b32 v3, 4, v3")
    a(f"v_lshl_add_u32 v3, v1, 7, v3")
    a(f"s_lshl_b32 {sr(sTmp)}, {sr(sPW)}, 13")
    a(f"v_add_u32 {vr(vXA0)}, {sr(sTmp)}, v3")
    a(f"v_xor_b32 {vr(vXA1)}, 64, {vr(vXA0)}")
    a(f"v_lshlrev_b32 v3, 4, {vr(L)}")
    a(f"v_add_u32 {vr(vBA0)}, {BBASE}, v3")
    a(f"v_xor_b32 {vr(vBA1)}, 64, {vr(vBA0)}")
    a(f"s_lshl_b32 {sr(sTmp)}, {sr(sPW)}, 6")
    a(f"s_add_u32 {sr(sTmp)}, {sr(sTmp)}, {sr(sM0)}")
    a(f"v_lshl_add_u32 v3, v2, 2, {sr(sTmp)}")
    a(f"v_mul_u32_u24 v3, {OROW}, v3")
    a(f"v_lshl_add_u32 v3, v1, 4, v3")
    a(f"s_lshl_b32 {sr(sTmp)}, {sr(sN0)}, 1")
    a(f"v_add_u32 {vr(vOO)}, {sr(sTmp)}, v3")
    for r in range(128): a(f"v_mov_b32 v{r}, 0")
    srd_bases()
    stamp()

    def reads(setn, u, h):
        r = []
        xa = vXA1 if h else vXA0
        for rb in range(4):
            r.append(f"ds_read_b128 {vr(vA+16*setn+4*rb,4)}, {vr(xa)} offset:{u*32768 + rb*2048}")
        for f in range(8):
            r.append(f"ds_read_b128 {vr(vB+32*setn+4*f,4)}, {vr(vBA1 if f>=4 else vBA0)} offset:{u*16384 + h*8192 + f*1024}")
        return [r[0], r[4], r[1], r[2], r[3]] + r[5:]
    def substep(setn, rd, extra=None):
        k = 0
        n = 0
        for f in range(8):
            for rb in range(4):
                acc = vACC + (rb*8+f)*4
                a(f"v_mfma_f32_16x16x32_bf16 {vr(acc,4)}, {vr(vA+16*setn+4*rb,4)}, {vr(vB+32*setn+4*f,4)}, {vr(acc,4)}")
                n += 1
                if n % 2 == 1 and k < len(rd):
                    a(rd[k]); k += 1
                elif extra and k >= len(rd):
                    a(extra.pop(0))
        assert k == len(rd) and not extra
    a("s_barrier")
    stamp()
    for s in reads(0, 0, 0): a(s)
    a(f"s_mov_b32 {sr(sCnt)}, 0")
    a.label("L_cloop")
    for u in range(2):
        a("s_waitcnt lgkmcnt(0)")
        ex = None
        if u == 1:
            ex = [f"v_xor_b32 {vr(vXA0)}, 0x10000, {vr(vXA0)}", f"v_xor_b32 {vr(vXA1)}, 0x10000, {vr(vXA1)}"]
        substep(0, reads(1, u, 1), ex)
        a("s_waitcnt lgkmcnt(0)")
        a("s_barrier")
        ex = None
        if u == 1:
            ex = [f"s_add_u32 {sr(sCnt)}, {sr(sCnt)}, 1", f"s_cmp_lt_u32 {sr(sCnt)}, 8"]
        substep(1, reads(0, 1-u, 0), ex)
    a("s_cbranch_scc1 L_cloop")
    stamp()
    a("s_nop 7")
    k = 0
    for rb in range(4):
        for r in range(4):
            t = vE + 4*(k % 4); k += 1
            for p in range(4):
                a(f"v_cvt_pk_bf16_f32 {vr(t+p)}, {vr(vACC+(rb*8+2*p)*4+r)}, {vr(vACC+(rb*8+2*p+1)*4+r)}")
            a(f"s_mov_b32 {sr(sTmp)}, {(16*rb+r)*OROW}")
            a(f"buffer_store_dwordx4 {vr(t,4)}, {vr(vOO)}, {sr(SO,4)}, {sr(sTmp)} offen" + (" " + opt.stflag if opt.stflag else ""))
    if STAMP:
        stamp()
        a("s_waitcnt vmcnt(0)")
        stamp()
        a.label("L_stamp")
        a("s_waitcnt lgkmcnt(0)")
        a(f"s_mov_b64 s[48:49], s[14:15]"); a("s_mov_b32 s50, 0x1000000"); a("s_mov_b32 s51, 0x20000")
        a(f"s_lshl_b32 s52, s2, 3"); a(f"s_add_u32 s52, s52, {sr(sWave)}"); a("s_lshl_b32 s52, s52, 6")
        a("s_mov_b64 exec, 1")
        a("v_mov_b32 v0, s52")
        for i in range(8):
            a(f"v_mov_b32 v2, {sr(sST+2*i)}"); a(f"v_mov_b32 v3, {sr(sST+2*i+1)}")
            a(f"buffer_store_dwordx2 v[2:3], v0, s[48:51], 0 offen offset:{8*i}")
            a("s_nop 1")
    a.label("L_end")
    a("s_endpgm")

    head = f"""; W4A16 GEMM (dequant fused): out[2048,3584] = x[2048,1024] @ ((qw - zeros) * scales)
; @launch grid=(224,1,1) block=(512,1,1) lds=163840
.amdgcn_target "amdgcn-amd-amdhsa--gfx950"
.text
.globl {NAME}
.p2align 8
.type {NAME},@function
{NAME}:
"""
    tail = f""".section .rodata,"a"
.p2align 6
.amdhsa_kernel {NAME}
  .amdhsa_next_free_vgpr 256
  .amdhsa_next_free_sgpr 102
  .amdhsa_accum_offset 256
  .amdhsa_group_segment_fixed_size 0
  .amdhsa_kernarg_size 56
  .amdhsa_user_sgpr_count 2
  .amdhsa_user_sgpr_kernarg_segment_ptr 1
  .amdhsa_system_sgpr_workgroup_id_x 1
.end_amdhsa_kernel
"""
    return head + a.text() + tail

if __name__ == "__main__":
    ap = argparse.ArgumentParser()
    ap.add_argument("-o", default="standalone__w4a16_gemm_dequant__prompt.s")
    ap.add_argument("--mix", type=int, default=0)
    ap.add_argument("--stamp", type=int, default=0)
    ap.add_argument("--prodfirst", type=int, default=1)
    ap.add_argument("--pprio", type=int, default=0)
    ap.add_argument("--cprio", type=int, default=0)
    ap.add_argument("--stflag", default="")
    ap.add_argument("--qflag", default="")
    ap.add_argument("--xflag", default="")
    ap.add_argument("--map", type=int, default=0)
    opt = ap.parse_args()
    open(opt.o, "w").write(gen(opt))
```

```python
import sys, argparse

NAME = "standalone__w4a16_gemm_dequant__prompt_kernel"
M, K, N = 2048, 1024, 3584
QROW = N * 4
XROW = K * 2
OROW = N * 2

class Asm:
    def __init__(self): self.l = []
    def __call__(self, s): self.l.append("    " + s)
    def label(self, s): self.l.append(s + ":")
    def c(self, s): self.l.append("    ; " + s)
    def text(self): return "\n".join(self.l) + "\n"

def vr(b, n=1): return f"v{b}" if n == 1 else f"v[{b}:{b+n-1}]"
def sr(b, n=1): return f"s{b}" if n == 1 else f"s[{b}:{b+n-1}]"

def gen(opt):
    a = Asm()
    MIX = opt.mix
    STAMP = opt.stamp
    SX, SQ, SS, SZ, SO = 16, 20, 24, 28, 32
    sWave, sPW, sM0, sN0 = 36, 37, 38, 39
    sQoff, sXoff, sXslot, sIdx, sCnt, sTmp, sTmp2, sXk = 40, 41, 42, 43, 44, 45, 46, 47
    sST = 60
    nst = [0]
    def stamp():
        if STAMP:
            a(f"s_memtime {sr(sST + 2*nst[0], 2)}"); nst[0] += 1
    XS = 4
    BBASE = XS * 32768

    if STAMP: a(f"s_memtime {sr(sST,2)}"); nst[0] = 1
    if opt.diagpad: a("s_memrealtime s[90:91]")
    a("s_cmp_ge_u32 s2, 224")
    a("s_cbranch_scc1 L_end")
    a("s_load_dwordx4 s[4:7], s[0:1], 0")
    a("s_load_dwordx4 s[8:11], s[0:1], 16")
    a("s_load_dwordx2 s[12:13], s[0:1], 32")
    if STAMP: a("s_load_dwordx2 s[14:15], s[0:1], 48")
    a("v_lshrrev_b32 v1, 6, v0")
    a("v_and_b32 v0, 63, v0")
    a(f"v_readfirstlane_b32 {sr(sWave)}, v1")
    if opt.map == 0:
        a(f"s_and_b32 {sr(sTmp)}, s2, 1")
        a(f"s_lshl_b32 {sr(sTmp)}, {sr(sTmp)}, 2")
        a(f"s_bfe_u32 {sr(sTmp2)}, s2, 0x20003")
        a(f"s_add_u32 {sr(sM0)}, {sr(sTmp)}, {sr(sTmp2)}")
        a(f"s_lshl_b32 {sr(sM0)}, {sr(sM0)}, 8")
        a(f"s_bfe_u32 {sr(sTmp)}, s2, 0x20001")
        a(f"s_mul_i32 {sr(sTmp)}, {sr(sTmp)}, 7")
        a(f"s_lshr_b32 {sr(sTmp2)}, s2, 5")
        a(f"s_add_u32 {sr(sN0)}, {sr(sTmp)}, {sr(sTmp2)}")
        a(f"s_lshl_b32 {sr(sN0)}, {sr(sN0)}, 7")
    else:
        a(f"s_and_b32 {sr(sTmp)}, s2, 7")
        a(f"s_mul_i32 {sr(sTmp)}, {sr(sTmp)}, 28")
        a(f"s_lshr_b32 {sr(sTmp2)}, s2, 3")
        a(f"s_add_u32 {sr(sTmp)}, {sr(sTmp)}, {sr(sTmp2)}")
        a(f"s_and_b32 {sr(sM0)}, {sr(sTmp)}, 7")
        a(f"s_lshl_b32 {sr(sM0)}, {sr(sM0)}, 8")
        a(f"s_lshr_b32 {sr(sN0)}, {sr(sTmp)}, 3")
        a(f"s_lshl_b32 {sr(sN0)}, {sr(sN0)}, 7")
    a(f"s_and_b32 {sr(sPW)}, {sr(sWave)}, 3")
    for srd, size in ((SX, M*XROW), (SQ, K*QROW), (SS, 32*OROW), (SZ, 32*OROW), (SO, M*OROW)):
        a(f"s_mov_b32 {sr(srd+2)}, {size}")
        a(f"s_mov_b32 {sr(srd+3)}, 0x20000")
    def srd_bases():
        a("s_waitcnt lgkmcnt(0)")
        for srd, p in ((SX, 4), (SQ, 6), (SS, 8), (SZ, 10), (SO, 12)):
            a(f"s_mov_b64 {sr(srd,2)}, {sr(p,2)}")
    prod_first = opt.prodfirst
    a(f"s_cmp_ge_u32 {sr(sWave)}, 4")
    a(("s_cbranch_scc1" if prod_first else "s_cbranch_scc0") + " L_consumer")

    vQO, vXO = 2, 10
    vSO, vWA, vRA0, vRA1 = 18, 19, 20, 21
    vT = 24
    vSF, vNZ = 32, 36
    vZF = 40
    vW = 48
    vQ = 64
    vSZ = 128
    if opt.pprio: a(f"s_setprio {opt.pprio}")
    a("v_and_b32 v22, 31, v0")
    a("v_lshrrev_b32 v23, 5, v0")
    a(f"s_lshl_b32 {sr(sTmp)}, {sr(sPW)}, 1")
    a(f"v_add_u32 v1, {sr(sTmp)}, v23")
    a(f"v_mul_u32_u24 v1, {8*QROW}, v1")
    a(f"s_lshl_b32 {sr(sTmp)}, {sr(sN0)}, 2")
    a(f"v_lshl_add_u32 v1, v22, 4, v1")
    a(f"v_add_u32 {vr(vQO)}, {sr(sTmp)}, v1")
    for j in range(1, 8):
        a(f"v_add_u32 {vr(vQO+j)}, {QROW}, {vr(vQO+j-1)}")
    a(f"s_lshl_b32 {sr(sTmp)}, {sr(sPW)}, 6")
    a(f"s_add_u32 {sr(sTmp)}, {sr(sTmp)}, {sr(sM0)}")
    a("v_lshrrev_b32 v1, 3, v0")
    a(f"v_add_u32 v1, {sr(sTmp)}, v1")
    a("v_lshlrev_b32 v1, 11, v1")
    a(f"v_lshrrev_b32 {vr(vT)}, 4, v0")
    a(f"v_and_b32 {vr(vT+1)}, 7, v0")
    a(f"v_xor_b32 {vr(vT)}, {vr(vT)}, {vr(vT+1)}")
    a(f"v_lshl_add_u32 {vr(vXO)}, {vr(vT)}, 4, v1")
    a(f"v_xor_b32 v1, 64, {vr(vXO)}")
    for q in range(1, 8):
        src = "v1" if q & 1 else vr(vXO)
        a(f"v_add_u32 {vr(vXO+q)}, {q*8*XROW - (q&3)*1024}, {src}")
    a(f"s_lshr_b32 {sr(sTmp)}, {sr(sPW)}, 1")
    a(f"v_lshrrev_b32 v1, 4, v0")
    a(f"v_lshl_add_u32 v1, v1, 1, {sr(sTmp)}")
    a(f"v_mul_u32_u24 v1, {OROW}, v1")
    a(f"v_and_b32 {vr(vT)}, 15, v0")
    a(f"v_lshl_add_u32 v1, {vr(vT)}, 4, v1")
    a(f"s_lshl_b32 {sr(sTmp)}, {sr(sN0)}, 1")
    a(f"v_add_u32 {vr(vSO)}, {sr(sTmp)}, v1")
    a(f"s_lshl_b32 {sr(sXslot)}, {sr(sPW)}, 13")
    srd_bases()
    stamp()

    ops = []
    def ld_q(u, j, tag, soff):
        r = vQ + 32*u + 4*j
        a(f"buffer_load_dwordx4 {vr(r,4)}, {vr(vQO+j)}, {sr(SQ,4)}, {soff} offen" + (" " + opt.qflag if opt.qflag else ""))
        ops.append(tag)
    def ld_x(q, tag, soff):
        off = (q & 3) * 1024
        a(f"buffer_load_dwordx4 {vr(vXO+q)}, {sr(SX,4)}, {soff} offen" + (f" offset:{off}" if off else "") + (" " + opt.xflag if opt.xflag else "") + " lds")
        ops.append(tag)
    for j in range(8): ld_q(0, j, ("q", 0, j), "0")
    a(f"s_add_u32 m0, {sr(sXslot)}, {3*32768}")
    for arr, srd in ((0, SS), (1, SZ)):
        if arr == 1: a(f"s_add_u32 m0, {sr(sXslot)}, {3*32768+4096}")
        for t in range(4):
            if t == 0: a("s_nop 0"); so = "0"
            else:
                a(f"s_mov_b32 {sr(sTmp)}, {t*(8*OROW-1024)}"); so = sr(sTmp)
            a(f"buffer_load_dwordx4 {vr(vSO)}, {sr(srd,4)}, {so} offen" + (f" offset:{t*1024}" if t else "") + " lds")
            ops.append(("s", arr, t))
    for q in range(8):
        if q % 4 == 0:
            a(f"s_add_u32 m0, {sr(sXslot)}, {q*1024}"); a("s_nop 0")
        ld_x(q, ("x", 0, q), "0")
    a(f"s_mov_b32 {sr(sQoff)}, {64*QROW}")
    a(f"s_mov_b32 {sr(sXoff)}, 128")
    for p in range(4):
        ld_q(1, 2*p, ("q", 1, 2*p), sr(sQoff)); ld_q(1, 2*p+1, ("q", 1, 2*p+1), sr(sQoff))
        if p % 2 == 0:
            a(f"s_add_u32 m0, {sr(sXslot)}, {32768 + p*2048}"); a("s_nop 0")
        ld_x(2*p, ("x", 1, 2*p), sr(sXoff)); ld_x(2*p+1, ("x", 1, 2*p+1), sr(sXoff))
    a(f"s_and_b32 {sr(sTmp)}, {sr(sPW)}, 1")
    a(f"s_lshl_b32 {sr(sTmp)}, {sr(sTmp)}, 1")
    a(f"v_add_u32 v1, {sr(sTmp)}, v23")
    a(f"v_lshrrev_b32 {vr(vT)}, 1, v22")
    a(f"v_lshl_add_u32 v1, v1, 4, {vr(vT)}")
    a(f"v_and_b32 {vr(vT)}, 1, v22")
    a(f"v_lshlrev_b32 {vr(vT+1)}, 2, {vr(vT)}")
    a(f"v_xor_b32 v1, v1, {vr(vT+1)}")
    a(f"v_lshlrev_b32 v1, 4, v1")
    a(f"v_lshl_add_u32 v1, {vr(vT)}, 12, v1")
    a(f"s_lshr_b32 {sr(sTmp)}, {sr(sPW)}, 1")
    a(f"s_lshl_b32 {sr(sTmp)}, {sr(sTmp)}, 13")
    a(f"s_add_u32 {sr(sTmp)}, {sr(sTmp)}, {BBASE}")
    a(f"v_add_u32 {vr(vWA)}, {sr(sTmp)}, v1")
    a(f"s_add_u32 {sr(sTmp)}, {sr(sXslot)}, {3*32768}")
    a(f"v_lshlrev_b32 v1, 3, v22")
    a(f"v_add_u32 {vr(vRA0)}, {sr(sTmp)}, v1")
    a(f"v_add_u32 {vr(vRA1)}, 256, {vr(vRA0)}")
    a(f"s_add_u32 {sr(sXslot)}, {sr(sXslot)}, {2*32768}")
    a(f"s_mov_b32 {sr(sIdx)}, 0")
    a(f"s_mov_b32 {sr(sXk)}, 128")
    def need(tag):
        return len(ops) - 1 - ops.index(tag)
    a(f"s_waitcnt vmcnt({need(('s',1,3))})")
    for i in range(16):
        a(f"ds_read2st64_b64 {vr(vSZ+4*i,4)}, {vr(vRA1 if i&1 else vRA0)} offset0:{i>>1} offset1:{8+(i>>1)}")
    a("s_waitcnt lgkmcnt(0)")
    stamp()

    sim = list(ops)
    waits = {}
    for i in range(16):
        for p in range(4):
            n = len(sim) - 1 - sim.index(("q", i, 2*p+1))
            waits[("q", i & 1, p)] = min(waits.get(("q", i & 1, p), 63), n)
            sim += [("q", i+2, 2*p), ("q", i+2, 2*p+1), ("x", i+2, 2*p), ("x", i+2, 2*p+1)]
        n = len(sim) - 1 - sim.index(("x", i, 7))
        waits[("x", i & 1)] = min(waits.get(("x", i & 1), 63), n)

    a.label("L_ploop")
    for u in range(2):
        a(f"s_set_gpr_idx_on {sr(sIdx)}, gpr_idx(SRC1)")
        b = vSZ + 4*u
        a(f"v_lshlrev_b32 {vr(vSF)}, 16, {vr(b)}")
        a(f"v_and_b32 {vr(vSF+1)}, 0xffff0000, {vr(b)}")
        a(f"v_lshlrev_b32 {vr(vSF+2)}, 16, {vr(b+1)}")
        a(f"v_and_b32 {vr(vSF+3)}, 0xffff0000, {vr(b+1)}")
        a(f"v_lshlrev_b32 {vr(vZF)}, 16, {vr(b+2)}")
        a(f"v_and_b32 {vr(vZF+1)}, 0xffff0000, {vr(b+2)}")
        a(f"v_lshlrev_b32 {vr(vZF+2)}, 16, {vr(b+3)}")
        a(f"v_and_b32 {vr(vZF+3)}, 0xffff0000, {vr(b+3)}")
        a("s_set_gpr_idx_off")
        a(f"s_add_u32 {sr(sQoff)}, {sr(sQoff)}, {64*QROW}")
        a(f"s_add_u32 {sr(sXk)}, {sr(sXk)}, 128")
        a(f"s_cmp_lt_u32 {sr(sXk)}, {XROW}")
        a(f"s_cselect_b32 {sr(sXoff)}, {sr(sXk)}, 0x10000000")
        for e in range(4):
            a(f"v_mul_f32_e64 {vr(vNZ+e)}, -{vr(vZF+e)}, {vr(vSF+e)}")
        if MIX:
            for e in range(4):
                a(f"v_mul_f32 {vr(vSF+e)}, 0x4b800000, {vr(vSF+e)}")
        for p in range(4):
            if p % 2 == 0:
                a(f"s_add_u32 m0, {sr(sXslot)}, {p*2048}")
            a(f"s_waitcnt vmcnt({waits[('q',u,p)]})")
            q0 = vQ + 32*u + 8*p
            if MIX:
                for t in range(8):
                    a(f"v_fma_mix_f32 {vr(vT+t)}, {vr(q0+t)}, {vr(vSF+(t&3))}, {vr(vNZ+(t&3))} op_sel_hi:[1,0,0]")
                ld_q(u, 2*p, None, sr(sQoff)); ld_q(u, 2*p+1, None, sr(sQoff))
            else:
                for t in range(8):
                    a(f"v_cvt_f32_i32 {vr(vT+t)}, {vr(q0+t)}")
                ld_q(u, 2*p, None, sr(sQoff)); ld_q(u, 2*p+1, None, sr(sQoff))
                for t in range(8):
                    a(f"v_fma_f32 {vr(vT+t)}, {vr(vT+t)}, {vr(vSF+(t&3))}, {vr(vNZ+(t&3))}")
            ld_x(2*p, None, sr(sXoff))
            for e in range(4):
                a(f"v_cvt_pk_bf16_f32 {vr(vW+4*e+p)}, {vr(vT+e)}, {vr(vT+4+e)}")
            ld_x(2*p+1, None, sr(sXoff))
        for e in range(4):
            a(f"ds_write_b128 {vr(vWA)}, {vr(vW+4*e,4)} offset:{u*16384 + e*1024}")
        a(f"s_add_u32 {sr(sXslot)}, {sr(sXslot)}, 32768")
        a(f"s_and_b32 {sr(sXslot)}, {sr(sXslot)}, 0x1ffff")
        if u == 1:
            a(f"s_add_u32 {sr(sIdx)}, {sr(sIdx)}, 8")
            a(f"s_cmp_lt_u32 {sr(sIdx)}, 64")
        a(f"s_waitcnt vmcnt({waits[('x',u)]}) lgkmcnt(0)")
        a("s_barrier")
    a("s_cbranch_scc1 L_ploop")
    stamp()
    if STAMP: a("s_branch L_stamp")
    a("s_endpgm")

    a.label("L_consumer")
    nst[0] = 1
    if opt.cprio: a(f"s_setprio {opt.cprio}")
    vACC = 0
    vA = 128
    vB = 160
    vXA0, vXA1, vBA0, vBA1, vOO = 224, 225, 226, 227, 228
    vE = 232
    L = 229
    a(f"v_mov_b32 {vr(L)}, v0")
    a(f"v_and_b32 v1, 15, {vr(L)}")
    a(f"v_lshrrev_b32 v2, 4, {vr(L)}")
    a(f"v_lshrrev_b32 v3, 1, v1")
    a(f"v_xor_b32 v3, v3, v2")
    a(f"v_lshlrev_b32 v3, 4, v3")
    a(f"v_lshl_add_u32 v3, v1, 7, v3")
    a(f"s_lshl_b32 {sr(sTmp)}, {sr(sPW)}, 13")
    a(f"v_add_u32 {vr(vXA0)}, {sr(sTmp)}, v3")
    a(f"v_xor_b32 {vr(vXA1)}, 64, {vr(vXA0)}")
    a(f"v_lshlrev_b32 v3, 4, {vr(L)}")
    a(f"v_add_u32 {vr(vBA0)}, {BBASE}, v3")
    a(f"v_xor_b32 {vr(vBA1)}, 64, {vr(vBA0)}")
    a(f"s_lshl_b32 {sr(sTmp)}, {sr(sPW)}, 6")
    a(f"s_add_u32 {sr(sTmp)}, {sr(sTmp)}, {sr(sM0)}")
    a(f"v_lshl_add_u32 v3, v2, 2, {sr(sTmp)}")
    a(f"v_mul_u32_u24 v3, {OROW}, v3")
    a(f"v_lshl_add_u32 v3, v1, 4, v3")
    a(f"s_lshl_b32 {sr(sTmp)}, {sr(sN0)}, 1")
    a(f"v_add_u32 {vr(vOO)}, {sr(sTmp)}, v3")
    for r in range(128): a(f"v_mov_b32 v{r}, 0")
    srd_bases()
    stamp()

    def reads(setn, u, h):
        r = []
        xa = vXA1 if h else vXA0
        for rb in range(4):
            r.append(f"ds_read_b128 {vr(vA+16*setn+4*rb,4)}, {vr(xa)} offset:{u*32768 + rb*2048}")
        for f in range(8):
            r.append(f"ds_read_b128 {vr(vB+32*setn+4*f,4)}, {vr(vBA1 if f>=4 else vBA0)} offset:{u*16384 + h*8192 + f*1024}")
        return [r[0], r[4], r[1], r[2], r[3]] + r[5:]
    def substep(setn, rd, extra=None):
        k = 0
        n = 0
        for f in range(8):
            for rb in range(4):
                acc = vACC + (rb*8+f)*4
                a(f"v_mfma_f32_16x16x32_bf16 {vr(acc,4)}, {vr(vA+16*setn+4*rb,4)}, {vr(vB+32*setn+4*f,4)}, {vr(acc,4)}")
                n += 1
                if n % 2 == 1 and k < len(rd):
                    a(rd[k]); k += 1
                elif extra and k >= len(rd):
                    a(extra.pop(0))
        assert k == len(rd) and not extra
    a("s_barrier")
    stamp()
    for s in reads(0, 0, 0): a(s)
    a(f"s_mov_b32 {sr(sCnt)}, 0")
    a.label("L_cloop")
    for u in range(2):
        a("s_waitcnt lgkmcnt(0)")
        ex = None
        if u == 1:
            ex = [f"v_xor_b32 {vr(vXA0)}, 0x10000, {vr(vXA0)}", f"v_xor_b32 {vr(vXA1)}, 0x10000, {vr(vXA1)}"]
        substep(0, reads(1, u, 1), ex)
        a("s_waitcnt lgkmcnt(0)")
        a("s_barrier")
        ex = None
        if u == 1:
            ex = [f"s_add_u32 {sr(sCnt)}, {sr(sCnt)}, 1", f"s_cmp_lt_u32 {sr(sCnt)}, 8"]
        substep(1, reads(0, 1-u, 0), ex)
    a("s_cbranch_scc1 L_cloop")
    stamp()
    a("s_nop 7")
    k = 0
    for rb in range(4):
        for r in range(4):
            t = vE + 4*(k % 4); k += 1
            for p in range(4):
                a(f"v_cvt_pk_bf16_f32 {vr(t+p)}, {vr(vACC+(rb*8+2*p)*4+r)}, {vr(vACC+(rb*8+2*p+1)*4+r)}")
            a(f"s_mov_b32 {sr(sTmp)}, {(16*rb+r)*OROW}")
            a(f"buffer_store_dwordx4 {vr(t,4)}, {vr(vOO)}, {sr(SO,4)}, {sr(sTmp)} offen" + (" " + opt.stflag if opt.stflag else ""))
    if STAMP:
        stamp()
        a("s_waitcnt vmcnt(0)")
        stamp()
        a.label("L_stamp")
        a("s_waitcnt lgkmcnt(0)")
        a(f"s_mov_b64 s[48:49], s[14:15]"); a("s_mov_b32 s50, 0x1000000"); a("s_mov_b32 s51, 0x20000")
        a(f"s_lshl_b32 s52, s2, 3"); a(f"s_add_u32 s52, s52, {sr(sWave)}"); a("s_lshl_b32 s52, s52, 6")
        a("s_mov_b64 exec, 1")
        a("v_mov_b32 v0, s52")
        for i in range(8):
            a(f"v_mov_b32 v2, {sr(sST+2*i)}"); a(f"v_mov_b32 v3, {sr(sST+2*i+1)}")
            a(f"buffer_store_dwordx2 v[2:3], v0, s[48:51], 0 offen offset:{8*i}")
            a("s_nop 1")
    if opt.diagpad:
        a("s_waitcnt vmcnt(0)")
        a.label("L_spin")
        a("s_memrealtime s[92:93]")
        a("s_waitcnt lgkmcnt(0)")
        a("s_sub_u32 s92, s92, s90")
        a(f"s_cmp_lt_u32 s92, {opt.diagpad*100}")
        a("s_cbranch_scc1 L_spin")
    a.label("L_end")
    a("s_endpgm")

    head = f"""; W4A16 GEMM (dequant fused): out[2048,3584] = x[2048,1024] @ ((qw - zeros) * scales)
; @launch grid=(224,1,1) block=(512,1,1) lds=163840
.amdgcn_target "amdgcn-amd-amdhsa--gfx950"
.text
.globl {NAME}
.p2align 8
.type {NAME},@function
{NAME}:
"""
    tail = f""".section .rodata,"a"
.p2align 6
.amdhsa_kernel {NAME}
  .amdhsa_next_free_vgpr 256
  .amdhsa_next_free_sgpr 102
  .amdhsa_accum_offset 256
  .amdhsa_group_segment_fixed_size 0
  .amdhsa_kernarg_size 56
  .amdhsa_user_sgpr_count 2
  .amdhsa_user_sgpr_kernarg_segment_ptr 1
  .amdhsa_system_sgpr_workgroup_id_x 1
.end_amdhsa_kernel
"""
    return head + a.text() + tail

if __name__ == "__main__":
    ap = argparse.ArgumentParser()
    ap.add_argument("-o", default="standalone__w4a16_gemm_dequant__prompt.s")
    ap.add_argument("--mix", type=int, default=0)
    ap.add_argument("--stamp", type=int, default=0)
    ap.add_argument("--prodfirst", type=int, default=1)
    ap.add_argument("--pprio", type=int, default=0)
    ap.add_argument("--cprio", type=int, default=0)
    ap.add_argument("--stflag", default="")
    ap.add_argument("--qflag", default="")
    ap.add_argument("--xflag", default="")
    ap.add_argument("--map", type=int, default=0)
    ap.add_argument("--diagpad", type=int, default=0)
    opt = ap.parse_args()
    open(opt.o, "w").write(gen(opt))
```

```python
import sys, argparse

NAME = "standalone__w4a16_gemm_dequant__prompt_kernel"
M, K, N = 2048, 1024, 3584
QROW = N * 4
XROW = K * 2
OROW = N * 2

class Asm:
    def __init__(self): self.l = []
    def __call__(self, s): self.l.append("    " + s)
    def label(self, s): self.l.append(s + ":")
    def c(self, s): self.l.append("    ; " + s)
    def text(self): return "\n".join(self.l) + "\n"

def vr(b, n=1): return f"v{b}" if n == 1 else f"v[{b}:{b+n-1}]"
def sr(b, n=1): return f"s{b}" if n == 1 else f"s[{b}:{b+n-1}]"

ORDERS = {
 "lock": [list(range(16))]*4,
 "win4": [[4*(t//4) + (t + p) % 4 for t in range(16)] for p in range(4)],
 "skew": [[0,4,1,2,3,8,5,6,7,12,9,10,11,13,14,15],
          [1,0,5,2,3,4,9,6,7,8,13,10,11,12,14,15],
          [2,0,1,6,3,4,5,10,7,8,9,14,11,12,13,15],
          [3,0,1,2,7,4,5,6,11,8,9,10,15,12,13,14]],
}
def pack(o):
    v = 0
    for t, k in enumerate(o): v |= k << (4*t)
    return v

def gen(opt):
    a = Asm()
    MIX = opt.mix
    STAMP = opt.stamp
    SX, SQ, SS, SZ, SO = 16, 20, 24, 28, 32
    sWave, sPW, sM0, sN0 = 36, 37, 38, 39
    sQoff, sXoff, sXslot, sIdx, sCnt, sTmp, sTmp2, sXk = 40, 41, 42, 43, 44, 45, 46, 47
    sOrdL, sOrdD, sRot, sK = 52, 54, 56, 57
    sST = 60
    nst = [0]
    def stamp():
        if STAMP:
            a(f"s_memtime {sr(sST + 2*nst[0], 2)}"); nst[0] += 1
    XS = 4
    BBASE = XS * 32768

    if STAMP: a(f"s_memtime {sr(sST,2)}"); nst[0] = 1
    if opt.diagpad: a("s_memrealtime s[90:91]")
    a("s_cmp_ge_u32 s2, 224")
    a("s_cbranch_scc1 L_end")
    a("s_load_dwordx4 s[4:7], s[0:1], 0")
    a("s_load_dwordx4 s[8:11], s[0:1], 16")
    a("s_load_dwordx2 s[12:13], s[0:1], 32")
    if STAMP: a("s_load_dwordx2 s[14:15], s[0:1], 48")
    a("v_lshrrev_b32 v1, 6, v0")
    a("v_and_b32 v0, 63, v0")
    a(f"v_readfirstlane_b32 {sr(sWave)}, v1")
    if opt.map == 0:
        a(f"s_and_b32 {sr(sTmp)}, s2, 1")
        a(f"s_lshl_b32 {sr(sTmp)}, {sr(sTmp)}, 2")
        a(f"s_bfe_u32 {sr(sTmp2)}, s2, 0x20003")
        a(f"s_add_u32 {sr(sM0)}, {sr(sTmp)}, {sr(sTmp2)}")
        a(f"s_lshl_b32 {sr(sM0)}, {sr(sM0)}, 8")
        a(f"s_bfe_u32 {sr(sTmp)}, s2, 0x20001")
        a(f"s_mul_i32 {sr(sTmp)}, {sr(sTmp)}, 7")
        a(f"s_lshr_b32 {sr(sTmp2)}, s2, 5")
        a(f"s_add_u32 {sr(sN0)}, {sr(sTmp)}, {sr(sTmp2)}")
        a(f"s_lshl_b32 {sr(sN0)}, {sr(sN0)}, 7")
    else:
        a(f"s_and_b32 {sr(sTmp)}, s2, 7")
        a(f"s_mul_i32 {sr(sTmp)}, {sr(sTmp)}, 28")
        a(f"s_lshr_b32 {sr(sTmp2)}, s2, 3")
        a(f"s_add_u32 {sr(sTmp)}, {sr(sTmp)}, {sr(sTmp2)}")
        a(f"s_and_b32 {sr(sM0)}, {sr(sTmp)}, 7")
        a(f"s_lshl_b32 {sr(sM0)}, {sr(sM0)}, 8")
        a(f"s_lshr_b32 {sr(sN0)}, {sr(sTmp)}, 3")
        a(f"s_lshl_b32 {sr(sN0)}, {sr(sN0)}, 7")
    a(f"s_and_b32 {sr(sPW)}, {sr(sWave)}, 3")
    for srd, size in ((SX, M*XROW), (SQ, K*QROW), (SS, 32*OROW), (SZ, 32*OROW), (SO, M*OROW)):
        a(f"s_mov_b32 {sr(srd+2)}, {size}")
        a(f"s_mov_b32 {sr(srd+3)}, 0x20000")
    def srd_bases():
        a("s_waitcnt lgkmcnt(0)")
        for srd, p in ((SX, 4), (SQ, 6), (SS, 8), (SZ, 10), (SO, 12)):
            a(f"s_mov_b64 {sr(srd,2)}, {sr(p,2)}")
    prod_first = opt.prodfirst
    a(f"s_cmp_ge_u32 {sr(sWave)}, 4")
    a(("s_cbranch_scc1" if prod_first else "s_cbranch_scc0") + " L_consumer")

    vQO, vXO = 2, 10
    vSO, vWA, vRA0, vRA1 = 18, 19, 20, 21
    vT = 24
    vSF, vNZ = 32, 36
    vZF = 40
    vW = 48
    vQ = 64
    vSZ = 128
    if opt.pprio: a(f"s_setprio {opt.pprio}")
    a("v_and_b32 v22, 31, v0")
    a("v_lshrrev_b32 v23, 5, v0")
    a(f"s_lshl_b32 {sr(sTmp)}, {sr(sPW)}, 1")
    a(f"v_add_u32 v1, {sr(sTmp)}, v23")
    a(f"v_mul_u32_u24 v1, {8*QROW}, v1")
    a(f"s_lshl_b32 {sr(sTmp)}, {sr(sN0)}, 2")
    a(f"v_lshl_add_u32 v1, v22, 4, v1")
    a(f"v_add_u32 {vr(vQO)}, {sr(sTmp)}, v1")
    for j in range(1, 8):
        a(f"v_add_u32 {vr(vQO+j)}, {QROW}, {vr(vQO+j-1)}")
    a(f"s_lshl_b32 {sr(sTmp)}, {sr(sPW)}, 6")
    a(f"s_add_u32 {sr(sTmp)}, {sr(sTmp)}, {sr(sM0)}")
    a("v_lshrrev_b32 v1, 3, v0")
    a(f"v_add_u32 v1, {sr(sTmp)}, v1")
    a("v_lshlrev_b32 v1, 11, v1")
    a(f"v_lshrrev_b32 {vr(vT)}, 4, v0")
    a(f"v_and_b32 {vr(vT+1)}, 7, v0")
    a(f"v_xor_b32 {vr(vT)}, {vr(vT)}, {vr(vT+1)}")
    a(f"v_lshl_add_u32 {vr(vXO)}, {vr(vT)}, 4, v1")
    a(f"v_xor_b32 v1, 64, {vr(vXO)}")
    for q in range(1, 8):
        src = "v1" if q & 1 else vr(vXO)
        a(f"v_add_u32 {vr(vXO+q)}, {q*8*XROW - (q&3)*1024}, {src}")
    a(f"s_lshr_b32 {sr(sTmp)}, {sr(sPW)}, 1")
    a(f"v_lshrrev_b32 v1, 4, v0")
    a(f"v_lshl_add_u32 v1, v1, 1, {sr(sTmp)}")
    a(f"v_mul_u32_u24 v1, {OROW}, v1")
    a(f"v_and_b32 {vr(vT)}, 15, v0")
    a(f"v_lshl_add_u32 v1, {vr(vT)}, 4, v1")
    a(f"s_lshl_b32 {sr(sTmp)}, {sr(sN0)}, 1")
    a(f"v_add_u32 {vr(vSO)}, {sr(sTmp)}, v1")
    a(f"s_lshl_b32 {sr(sXslot)}, {sr(sPW)}, 13")
    a(f"s_lshr_b32 {sr(sTmp)}, s2, 3")
    a(f"s_lshr_b32 {sr(sTmp2)}, s2, 5")
    a(f"s_add_u32 {sr(sTmp)}, {sr(sTmp)}, {sr(sTmp2)}")
    a(f"s_and_b32 {sr(sTmp)}, {sr(sTmp)}, 3")
    for p in range(4):
        v = pack(ORDERS[opt.order][p])
        if p == 0:
            a(f"s_mov_b32 {sr(sOrdL)}, {v & 0xffffffff:#x}"); a(f"s_mov_b32 {sr(sOrdL+1)}, {v >> 32:#x}")
        else:
            a(f"s_cmp_eq_u32 {sr(sTmp)}, {p}")
            a(f"s_cselect_b32 {sr(sOrdL)}, {v & 0xffffffff:#x}, {sr(sOrdL)}"); a(f"s_cselect_b32 {sr(sOrdL+1)}, {v >> 32:#x}, {sr(sOrdL+1)}")
    a(f"s_mov_b64 {sr(sOrdD,2)}, {sr(sOrdL,2)}")
    rot = [((4*(x>>1) + 8*(x&1)) & 15) if opt.rot else 0 for x in range(8)]
    rv = sum(r << (4*i) for i, r in enumerate(rot))
    a(f"s_and_b32 {sr(sTmp)}, s2, 7"); a(f"s_lshl_b32 {sr(sTmp)}, {sr(sTmp)}, 2")
    a(f"s_lshr_b32 {sr(sRot)}, {rv:#x}, {sr(sTmp)}")
    def next_load_step():
        a(f"s_add_u32 {sr(sK)}, {sr(sOrdL)}, {sr(sRot)}")
        a(f"s_and_b32 {sr(sK)}, {sr(sK)}, 15")
        a(f"s_lshr_b64 {sr(sOrdL,2)}, {sr(sOrdL,2)}, 4")
        a(f"s_mul_i32 {sr(sQoff)}, {sr(sK)}, {64*QROW}")
        a(f"s_lshl_b32 {sr(sXoff)}, {sr(sK)}, 7")
    next_load_step()
    srd_bases()
    stamp()

    ops = []
    def ld_q(u, j, tag, soff):
        r = vQ + 32*u + 4*j
        a(f"buffer_load_dwordx4 {vr(r,4)}, {vr(vQO+j)}, {sr(SQ,4)}, {soff} offen" + (" " + opt.qflag if opt.qflag else ""))
        ops.append(tag)
    def ld_x(q, tag, soff):
        off = (q & 3) * 1024
        a(f"buffer_load_dwordx4 {vr(vXO+q)}, {sr(SX,4)}, {soff} offen" + (f" offset:{off}" if off else "") + (" " + opt.xflag if opt.xflag else "") + " lds")
        ops.append(tag)
    for j in range(8): ld_q(0, j, ("q", 0, j), sr(sQoff))
    a(f"s_add_u32 m0, {sr(sXslot)}, {3*32768}")
    for arr, srd in ((0, SS), (1, SZ)):
        if arr == 1: a(f"s_add_u32 m0, {sr(sXslot)}, {3*32768+4096}")
        for t in range(4):
            if t == 0: a("s_nop 0"); so = "0"
            else:
                a(f"s_mov_b32 {sr(sTmp)}, {t*(8*OROW-1024)}"); so = sr(sTmp)
            a(f"buffer_load_dwordx4 {vr(vSO)}, {sr(srd,4)}, {so} offen" + (f" offset:{t*1024}" if t else "") + " lds")
            ops.append(("s", arr, t))
    for q in range(8):
        if q % 4 == 0:
            a(f"s_add_u32 m0, {sr(sXslot)}, {q*1024}"); a("s_nop 0")
        ld_x(q, ("x", 0, q), sr(sXoff))
    next_load_step()
    for p in range(4):
        ld_q(1, 2*p, ("q", 1, 2*p), sr(sQoff)); ld_q(1, 2*p+1, ("q", 1, 2*p+1), sr(sQoff))
        if p % 2 == 0:
            a(f"s_add_u32 m0, {sr(sXslot)}, {32768 + p*2048}"); a("s_nop 0")
        ld_x(2*p, ("x", 1, 2*p), sr(sXoff)); ld_x(2*p+1, ("x", 1, 2*p+1), sr(sXoff))
    a(f"s_and_b32 {sr(sTmp)}, {sr(sPW)}, 1")
    a(f"s_lshl_b32 {sr(sTmp)}, {sr(sTmp)}, 1")
    a(f"v_add_u32 v1, {sr(sTmp)}, v23")
    a(f"v_lshrrev_b32 {vr(vT)}, 1, v22")
    a(f"v_lshl_add_u32 v1, v1, 4, {vr(vT)}")
    a(f"v_and_b32 {vr(vT)}, 1, v22")
    a(f"v_lshlrev_b32 {vr(vT+1)}, 2, {vr(vT)}")
    a(f"v_xor_b32 v1, v1, {vr(vT+1)}")
    a(f"v_lshlrev_b32 v1, 4, v1")
    a(f"v_lshl_add_u32 v1, {vr(vT)}, 12, v1")
    a(f"s_lshr_b32 {sr(sTmp)}, {sr(sPW)}, 1")
    a(f"s_lshl_b32 {sr(sTmp)}, {sr(sTmp)}, 13")
    a(f"s_add_u32 {sr(sTmp)}, {sr(sTmp)}, {BBASE}")
    a(f"v_add_u32 {vr(vWA)}, {sr(sTmp)}, v1")
    a(f"s_add_u32 {sr(sTmp)}, {sr(sXslot)}, {3*32768}")
    a(f"v_lshlrev_b32 v1, 3, v22")
    a(f"v_add_u32 {vr(vRA0)}, {sr(sTmp)}, v1")
    a(f"v_add_u32 {vr(vRA1)}, 256, {vr(vRA0)}")
    a(f"s_add_u32 {sr(sXslot)}, {sr(sXslot)}, {2*32768}")
    a(f"s_mov_b32 {sr(sCnt)}, 0")
    def need(tag):
        return len(ops) - 1 - ops.index(tag)
    a(f"s_waitcnt vmcnt({need(('s',1,3))})")
    for i in range(16):
        a(f"ds_read2st64_b64 {vr(vSZ+4*i,4)}, {vr(vRA1 if i&1 else vRA0)} offset0:{i>>1} offset1:{8+(i>>1)}")
    a("s_waitcnt lgkmcnt(0)")
    stamp()

    sim = list(ops)
    waits = {}
    for i in range(16):
        for p in range(4):
            n = len(sim) - 1 - sim.index(("q", i, 2*p+1))
            waits[("q", i & 1, p)] = min(waits.get(("q", i & 1, p), 63), n)
            sim += [("q", i+2, 2*p), ("q", i+2, 2*p+1), ("x", i+2, 2*p), ("x", i+2, 2*p+1)]
        n = len(sim) - 1 - sim.index(("x", i, 7))
        waits[("x", i & 1)] = min(waits.get(("x", i & 1), 63), n)

    a.label("L_ploop")
    for u in range(2):
        a(f"s_add_u32 {sr(sIdx)}, {sr(sOrdD)}, {sr(sRot)}")
        a(f"s_and_b32 {sr(sIdx)}, {sr(sIdx)}, 15")
        a(f"s_lshl_b32 {sr(sIdx)}, {sr(sIdx)}, 2")
        a(f"s_lshr_b64 {sr(sOrdD,2)}, {sr(sOrdD,2)}, 4")
        a(f"s_set_gpr_idx_on {sr(sIdx)}, gpr_idx(SRC1)")
        b = vSZ
        a(f"v_lshlrev_b32 {vr(vSF)}, 16, {vr(b)}")
        a(f"v_and_b32 {vr(vSF+1)}, 0xffff0000, {vr(b)}")
        a(f"v_lshlrev_b32 {vr(vSF+2)}, 16, {vr(b+1)}")
        a(f"v_and_b32 {vr(vSF+3)}, 0xffff0000, {vr(b+1)}")
        a(f"v_lshlrev_b32 {vr(vZF)}, 16, {vr(b+2)}")
        a(f"v_and_b32 {vr(vZF+1)}, 0xffff0000, {vr(b+2)}")
        a(f"v_lshlrev_b32 {vr(vZF+2)}, 16, {vr(b+3)}")
        a(f"v_and_b32 {vr(vZF+3)}, 0xffff0000, {vr(b+3)}")
        a("s_set_gpr_idx_off")
        next_load_step()
        a(f"s_cmp_lt_u32 {sr(sCnt)}, 7")
        a(f"s_cselect_b32 {sr(sXoff)}, {sr(sXoff)}, 0x10000000")
        a(f"s_cselect_b32 {sr(sQoff)}, {sr(sQoff)}, 0x10000000")
        for e in range(4):
            a(f"v_mul_f32_e64 {vr(vNZ+e)}, -{vr(vZF+e)}, {vr(vSF+e)}")
        if MIX:
            for e in range(4):
                a(f"v_mul_f32 {vr(vSF+e)}, 0x4b800000, {vr(vSF+e)}")
        for p in range(4):
            if p % 2 == 0:
                a(f"s_add_u32 m0, {sr(sXslot)}, {p*2048}")
            a(f"s_waitcnt vmcnt({waits[('q',u,p)]})")
            q0 = vQ + 32*u + 8*p
            if MIX:
                for t in range(8):
                    a(f"v_fma_mix_f32 {vr(vT+t)}, {vr(q0+t)}, {vr(vSF+(t&3))}, {vr(vNZ+(t&3))} op_sel_hi:[1,0,0]")
                ld_q(u, 2*p, None, sr(sQoff)); ld_q(u, 2*p+1, None, sr(sQoff))
            else:
                for t in range(8):
                    a(f"v_cvt_f32_i32 {vr(vT+t)}, {vr(q0+t)}")
                ld_q(u, 2*p, None, sr(sQoff)); ld_q(u, 2*p+1, None, sr(sQoff))
                for t in range(8):
                    a(f"v_fma_f32 {vr(vT+t)}, {vr(vT+t)}, {vr(vSF+(t&3))}, {vr(vNZ+(t&3))}")
            ld_x(2*p, None, sr(sXoff))
            for e in range(4):
                a(f"v_cvt_pk_bf16_f32 {vr(vW+4*e+p)}, {vr(vT+e)}, {vr(vT+4+e)}")
            ld_x(2*p+1, None, sr(sXoff))
        for e in range(4):
            a(f"ds_write_b128 {vr(vWA)}, {vr(vW+4*e,4)} offset:{u*16384 + e*1024}")
        a(f"s_add_u32 {sr(sXslot)}, {sr(sXslot)}, 32768")
        a(f"s_and_b32 {sr(sXslot)}, {sr(sXslot)}, 0x1ffff")
        if u == 1:
            a(f"s_add_u32 {sr(sCnt)}, {sr(sCnt)}, 1")
            a(f"s_cmp_lt_u32 {sr(sCnt)}, 8")
        a(f"s_waitcnt vmcnt({waits[('x',u)]}) lgkmcnt(0)")
        a("s_barrier")
    a("s_cbranch_scc1 L_ploop")
    stamp()
    if STAMP: a("s_branch L_stamp")
    a("s_endpgm")

    a.label("L_consumer")
    nst[0] = 1
    if opt.cprio: a(f"s_setprio {opt.cprio}")
    vACC = 0
    vA = 128
    vB = 160
    vXA0, vXA1, vBA0, vBA1, vOO = 224, 225, 226, 227, 228
    vE = 232
    L = 229
    a(f"v_mov_b32 {vr(L)}, v0")
    a(f"v_and_b32 v1, 15, {vr(L)}")
    a(f"v_lshrrev_b32 v2, 4, {vr(L)}")
    a(f"v_lshrrev_b32 v3, 1, v1")
    a(f"v_xor_b32 v3, v3, v2")
    a(f"v_lshlrev_b32 v3, 4, v3")
    a(f"v_lshl_add_u32 v3, v1, 7, v3")
    a(f"s_lshl_b32 {sr(sTmp)}, {sr(sPW)}, 13")
    a(f"v_add_u32 {vr(vXA0)}, {sr(sTmp)}, v3")
    a(f"v_xor_b32 {vr(vXA1)}, 64, {vr(vXA0)}")
    a(f"v_lshlrev_b32 v3, 4, {vr(L)}")
    a(f"v_add_u32 {vr(vBA0)}, {BBASE}, v3")
    a(f"v_xor_b32 {vr(vBA1)}, 64, {vr(vBA0)}")
    a(f"s_lshl_b32 {sr(sTmp)}, {sr(sPW)}, 6")
    a(f"s_add_u32 {sr(sTmp)}, {sr(sTmp)}, {sr(sM0)}")
    a(f"v_lshl_add_u32 v3, v2, 2, {sr(sTmp)}")
    a(f"v_mul_u32_u24 v3, {OROW}, v3")
    a(f"v_lshl_add_u32 v3, v1, 4, v3")
    a(f"s_lshl_b32 {sr(sTmp)}, {sr(sN0)}, 1")
    a(f"v_add_u32 {vr(vOO)}, {sr(sTmp)}, v3")
    for r in range(128): a(f"v_mov_b32 v{r}, 0")
    srd_bases()
    stamp()

    def reads(setn, u, h):
        r = []
        xa = vXA1 if h else vXA0
        for rb in range(4):
            r.append(f"ds_read_b128 {vr(vA+16*setn+4*rb,4)}, {vr(xa)} offset:{u*32768 + rb*2048}")
        for f in range(8):
            r.append(f"ds_read_b128 {vr(vB+32*setn+4*f,4)}, {vr(vBA1 if f>=4 else vBA0)} offset:{u*16384 + h*8192 + f*1024}")
        return [r[0], r[4], r[1], r[2], r[3]] + r[5:]
    def substep(setn, rd, extra=None):
        k = 0
        n = 0
        for f in range(8):
            for rb in range(4):
                acc = vACC + (rb*8+f)*4
                a(f"v_mfma_f32_16x16x32_bf16 {vr(acc,4)}, {vr(vA+16*setn+4*rb,4)}, {vr(vB+32*setn+4*f,4)}, {vr(acc,4)}")
                n += 1
                if n % 2 == 1 and k < len(rd):
                    a(rd[k]); k += 1
                elif extra and k >= len(rd):
                    a(extra.pop(0))
        assert k == len(rd) and not extra
    a("s_barrier")
    stamp()
    for s in reads(0, 0, 0): a(s)
    a(f"s_mov_b32 {sr(sCnt)}, 0")
    a.label("L_cloop")
    for u in range(2):
        a("s_waitcnt lgkmcnt(0)")
        ex = None
        if u == 1:
            ex = [f"v_xor_b32 {vr(vXA0)}, 0x10000, {vr(vXA0)}", f"v_xor_b32 {vr(vXA1)}, 0x10000, {vr(vXA1)}"]
        substep(0, reads(1, u, 1), ex)
        a("s_waitcnt lgkmcnt(0)")
        a("s_barrier")
        ex = None
        if u == 1:
            ex = [f"s_add_u32 {sr(sCnt)}, {sr(sCnt)}, 1", f"s_cmp_lt_u32 {sr(sCnt)}, 8"]
        substep(1, reads(0, 1-u, 0), ex)
    a("s_cbranch_scc1 L_cloop")
    stamp()
    a("s_nop 7")
    k = 0
    for rb in range(4):
        for r in range(4):
            t = vE + 4*(k % 4); k += 1
            for p in range(4):
                a(f"v_cvt_pk_bf16_f32 {vr(t+p)}, {vr(vACC+(rb*8+2*p)*4+r)}, {vr(vACC+(rb*8+2*p+1)*4+r)}")
            a(f"s_mov_b32 {sr(sTmp)}, {(16*rb+r)*OROW}")
            a(f"buffer_store_dwordx4 {vr(t,4)}, {vr(vOO)}, {sr(SO,4)}, {sr(sTmp)} offen" + (" " + opt.stflag if opt.stflag else ""))
    if STAMP:
        stamp()
        a("s_waitcnt vmcnt(0)")
        stamp()
        a.label("L_stamp")
        a("s_waitcnt lgkmcnt(0)")
        a(f"s_mov_b64 s[48:49], s[14:15]"); a("s_mov_b32 s50, 0x1000000"); a("s_mov_b32 s51, 0x20000")
        a(f"s_lshl_b32 s58, s2, 3"); a(f"s_add_u32 s58, s58, {sr(sWave)}"); a("s_lshl_b32 s58, s58, 6")
        a("s_mov_b64 exec, 1")
        a("v_mov_b32 v0, s58")
        for i in range(8):
            a(f"v_mov_b32 v2, {sr(sST+2*i)}"); a(f"v_mov_b32 v3, {sr(sST+2*i+1)}")
            a(f"buffer_store_dwordx2 v[2:3], v0, s[48:51], 0 offen offset:{8*i}")
            a("s_nop 1")
    if opt.diagpad:
        a("s_waitcnt vmcnt(0)")
        a.label("L_spin")
        a("s_memrealtime s[92:93]")
        a("s_waitcnt lgkmcnt(0)")
        a("s_sub_u32 s92, s92, s90")
        a(f"s_cmp_lt_u32 s92, {opt.diagpad*100}")
        a("s_cbranch_scc1 L_spin")
    a.label("L_end")
    a("s_endpgm")

    head = f"""; W4A16 GEMM (dequant fused): out[2048,3584] = x[2048,1024] @ ((qw - zeros) * scales)
; @launch grid=(224,1,1) block=(512,1,1) lds=163840
.amdgcn_target "amdgcn-amd-amdhsa--gfx950"
.text
.globl {NAME}
.p2align 8
.type {NAME},@function
{NAME}:
"""
    tail = f""".section .rodata,"a"
.p2align 6
.amdhsa_kernel {NAME}
  .amdhsa_next_free_vgpr 256
  .amdhsa_next_free_sgpr 102
  .amdhsa_accum_offset 256
  .amdhsa_group_segment_fixed_size 0
  .amdhsa_kernarg_size 56
  .amdhsa_user_sgpr_count 2
  .amdhsa_user_sgpr_kernarg_segment_ptr 1
  .amdhsa_system_sgpr_workgroup_id_x 1
.end_amdhsa_kernel
"""
    return head + a.text() + tail

if __name__ == "__main__":
    ap = argparse.ArgumentParser()
    ap.add_argument("-o", default="standalone__w4a16_gemm_dequant__prompt.s")
    ap.add_argument("--mix", type=int, default=0)
    ap.add_argument("--stamp", type=int, default=0)
    ap.add_argument("--prodfirst", type=int, default=1)
    ap.add_argument("--pprio", type=int, default=0)
    ap.add_argument("--cprio", type=int, default=0)
    ap.add_argument("--stflag", default="")
    ap.add_argument("--qflag", default="")
    ap.add_argument("--xflag", default="")
    ap.add_argument("--map", type=int, default=0)
    ap.add_argument("--diagpad", type=int, default=0)
    ap.add_argument("--order", default="skew")
    ap.add_argument("--rot", type=int, default=1)
    opt = ap.parse_args()
    open(opt.o, "w").write(gen(opt))
```
